```python
import torch

def _softmax(x, axis=-1):
    return torch.softmax(x, dim=axis)
def _gelu(x):
    return torch.nn.functional.gelu(x, approximate="tanh")
def _silu(x):
    return torch.nn.functional.silu(x)
def _sigmoid(x):
    return torch.sigmoid(x)
def _layernorm(x, axis=-1, eps=1e-5):
    m = x.mean(dim=axis, keepdim=True)
    v = x.var(dim=axis, keepdim=True, unbiased=False)
    return (x - m) / torch.sqrt(v + eps)
def _scatter_add(tgt, idx, src, axis=0):
    return tgt.clone().index_add_(axis, idx, src)
def _segment_sum(src, seg, n):
    out = torch.zeros((n,) + src.shape[1:], dtype=src.dtype)
    return out.index_add_(0, seg, src)
def _pad(x, pw):
    flat = tuple(v for pair in reversed(pw) for v in pair)
    return torch.nn.functional.pad(x, flat)

kernel_name = 'standalone__glu_gated_geglu__decode'

def setup_inputs():

    _w = (lambda a: (lambda t: t.to(torch.bfloat16) if t.is_floating_point() else t)(torch.as_tensor(a)))
    B, S, Dm, Df = 1, 1, 1024, 3584
    return {
        "x": _w((lambda *s: torch.randn(*s, dtype=torch.bfloat16) * 0.05)(B, S, Dm)),
        "w_gate": _w((lambda *s: torch.randn(*s, dtype=torch.bfloat16) * 0.05)(Dm, Df) * (Dm ** -0.5)),
        "w_up": _w((lambda *s: torch.randn(*s, dtype=torch.bfloat16) * 0.05)(Dm, Df) * (Dm ** -0.5)),
        "w_down": _w((lambda *s: torch.randn(*s, dtype=torch.bfloat16) * 0.05)(Df, Dm) * (Df ** -0.5)),
    }

def reference(x, w_gate, w_up, w_down):
    g = torch.einsum("bsd,df->bsf", x, w_gate)
    u = torch.einsum("bsd,df->bsf", x, w_up)
    h = _gelu(g) * u
    return torch.einsum("bsf,fd->bsd", h, w_down)
```

```python
import sys
L = []
def e(s): L.append("    " + s)
def lab(s): L.append(s + ":")

HDR = open("standalone__glu_gated_geglu__decode.s.ref").read().split("; Override")[0]
L.append(HDR.rstrip())
L.append("; @launch kernel=glu_main_kernel grid=(224,1,1) block=(256,1,1) lds=4096")
L.append("; @launch kernel=glu_red_kernel grid=(64,1,1) block=(256,1,1) lds=1024")
L.append('.amdgcn_target "amdgcn-amd-amdhsa--gfx950"')
L.append(".text")
L.append(".globl glu_main_kernel\n.p2align 8\n.type glu_main_kernel,@function")
lab("glu_main_kernel")
e("s_cmp_ge_u32 s2, 224")
e("s_cbranch_scc1 L_main_done")
e("s_load_dwordx4 s[4:7], s[0:1], 0")
e("s_load_dwordx4 s[8:11], s[0:1], 16")
e("s_load_dwordx2 s[12:13], s[0:1], 48")
e("s_and_b32 s3, s2, 7")
e("s_lshr_b32 s14, s2, 3")
e("s_lshr_b32 s15, s14, 2")
e("s_lshl_b32 s15, s15, 3")
e("s_add_u32 s15, s15, s3")
e("s_lshl_b32 s15, s15, 2")
e("s_and_b32 s14, s14, 3")
e("s_add_u32 s15, s15, s14")
e("s_lshl_b32 s40, s15, 5")
for i in range(1, 8):
    e(f"s_add_u32 s{40+i}, s40, {i*7168}")
e("s_lshl_b32 s48, s15, 15")
for i in range(1, 4):
    e(f"s_add_u32 s{48+i}, s48, {i*4096}")
e("v_lshrrev_b32 v3, 1, v0")
e("s_movk_i32 s14, 7168*8")
e("v_mul_lo_u32 v1, s14, v3")
e("v_and_b32 v2, 1, v0")
e("v_lshl_add_u32 v1, v2, 4, v1")
e("v_lshlrev_b32 v3, 4, v3")
e("v_and_b32 v2, 31, v0")
e("v_lshlrev_b32 v2, 4, v2")
e("v_lshrrev_b32 v104, 6, v0")
e("v_lshl_add_u32 v2, v104, 9, v2")
e("v_bfe_u32 v104, v0, 5, 1")
e("v_lshl_add_u32 v2, v104, 14, v2")
e("s_waitcnt lgkmcnt(0)")
def srd(d, b, n):
    e(f"s_mov_b32 s{d}, s{b}")
    e(f"s_and_b32 s{d+1}, s{b+1}, 0xffff")
    e(f"s_mov_b32 s{d+2}, {n}")
    e(f"s_mov_b32 s{d+3}, 0x00020000")
srd(16, 4, 2048)
srd(20, 6, 1024*7168)
srd(24, 8, 1024*7168)
srd(28, 10, 3584*2048)
srd(32, 12, 224*4096)
e("buffer_load_dwordx4 v[4:7], v3, s[16:19], 0 offen")
for i in range(8):
    e(f"buffer_load_dwordx4 v[{8+4*i}:{11+4*i}], v1, s[20:23], s{40+i} offen")
    e(f"buffer_load_dwordx4 v[{40+4*i}:{43+4*i}], v1, s[24:27], s{40+i} offen")
for i in range(8):
    e(f"buffer_load_dwordx4 v[{72+4*i}:{75+4*i}], v2, s[28:31], s{48+i//2} offen offset:{(i%2)*2048}")
for a in range(104, 120):
    e(f"v_mov_b32 v{a}, 0")
e("s_mov_b32 s36, 0x05040100")
e("s_mov_b32 s37, 0x07060302")
for p in range(4):
    e(f"s_waitcnt vmcnt({25 - (1 + 4*(p+1))})")
    for (base, acc) in ((8, 104), (40, 112)):
        r0 = base + 8*p; r1 = r0 + 4
        for c in range(4):
            e(f"v_perm_b32 v120, v{r1+c}, v{r0+c}, s36")
            e(f"v_perm_b32 v121, v{r1+c}, v{r0+c}, s37")
            e(f"v_dot2c_f32_bf16 v{acc+2*c}, v120, v{4+p}")
            e(f"v_dot2c_f32_bf16 v{acc+2*c+1}, v121, v{4+p}")
e("s_nop 2")
for sh in (2, 4, 8):
    for a in range(104, 120):
        e(f"v_add_f32_dpp v{a}, v{a}, v{a} row_shr:{sh} row_mask:0xf bank_mask:0xf bound_ctrl:0")
e("v_and_b32 v120, 14, v0")
e("v_lshrrev_b32 v121, 4, v0")
e("v_lshlrev_b32 v121, 7, v121")
e("v_and_b32 v122, 1, v0")
e("v_lshl_add_u32 v121, v122, 5, v121")
e("v_cmp_eq_u32 vcc, 14, v120")
e("s_and_saveexec_b64 s[38:39], vcc")
e("ds_write_b128 v121, v[104:107]")
e("ds_write_b128 v121, v[108:111] offset:16")
e("ds_write_b128 v121, v[112:115] offset:64")
e("ds_write_b128 v121, v[116:119] offset:80")
e("s_mov_b64 exec, s[38:39]")
e("v_and_b32 v120, 31, v0")
e("v_lshlrev_b32 v120, 2, v120")
e("v_bfe_u32 v121, v0, 5, 1")
e("v_lshl_add_u32 v120, v121, 10, v120")
e("s_waitcnt lgkmcnt(0)")
e("s_barrier")
for i in range(8):
    e(f"ds_read_b32 v{104+i}, v120 offset:{i*128}")
e("s_waitcnt lgkmcnt(0)")
e("v_add_f32 v104, v104, v105")
e("v_add_f32 v106, v106, v107")
e("v_add_f32 v108, v108, v109")
e("v_add_f32 v110, v110, v111")
e("v_add_f32 v104, v104, v106")
e("v_add_f32 v108, v108, v110")
e("v_add_f32 v104, v104, v108")
e("v_mov_b32 v105, v104")
e("s_nop 1")
e("v_permlane32_swap_b32 v104, v105")
e("s_nop 1")
e("v_add_f32 v104, v104, v105")
e("v_cvt_pk_bf16_f32 v104, v104, v104")
e("v_and_b32 v104, 0xffff0000, v104")
e("v_mov_b32 v105, v104")
e("s_nop 1")
e("v_permlane16_swap_b32 v104, v105")
e("s_nop 1")
import math
c1 = -2*math.log2(math.e)*0.7978845608028654
e("v_mul_f32 v106, v104, v104")
e("v_mov_b32 v107, 0x3d372713")
e("v_fma_f32 v106, v106, v107, 1.0")
e("v_mul_f32 v106, v106, v104")
import struct
def f2h(x): return "0x%08x" % struct.unpack("<I", struct.pack("<f", x))[0]
e(f"v_mul_f32 v106, {f2h(c1)}, v106")
e("v_exp_f32 v106, v106")
e("s_nop 0")
e("v_add_f32 v106, 1.0, v106")
e("v_rcp_f32 v106, v106")
e("s_nop 0")
e("v_mul_f32 v106, v106, v104")
e("v_cvt_pk_bf16_f32 v106, v106, v106")
e("v_and_b32 v106, 0xffff0000, v106")
e("v_mul_f32 v106, v106, v105")
e("v_cvt_pk_bf16_f32 v106, v106, v106")
e("v_lshrrev_b32 v107, 6, v0")
e("v_lshlrev_b32 v107, 5, v107")
e("v_and_b32 v108, 63, v0")
e("v_lshl_add_u32 v109, v108, 1, v107")
e("v_bfe_u32 v110, v0, 5, 1")
e("v_lshl_add_u32 v110, v110, 4, v107")
e("v_cmp_gt_u32 vcc, 16, v108")
e("s_and_saveexec_b64 s[38:39], vcc")
e("ds_write_b16 v109, v106 offset:2048")
e("s_mov_b64 exec, s[38:39]")
e("s_waitcnt lgkmcnt(0)")
e("ds_read_b128 v[4:7], v110 offset:2048")
for a in range(104, 112):
    e(f"v_mov_b32 v{a}, 0")
e("s_waitcnt lgkmcnt(0)")
for p in range(4):
    e(f"s_waitcnt vmcnt({8 - 2*(p+1)})")
    r0 = 72 + 8*p; r1 = r0 + 4
    for c in range(4):
        e(f"v_perm_b32 v120, v{r1+c}, v{r0+c}, s36")
        e(f"v_perm_b32 v121, v{r1+c}, v{r0+c}, s37")
        e(f"v_dot2c_f32_bf16 v{104+2*c}, v120, v{4+p}")
        e(f"v_dot2c_f32_bf16 v{104+2*c+1}, v121, v{4+p}")
e("v_and_b32 v120, 31, v0")
e("v_lshlrev_b32 v120, 5, v120")
e("v_lshrrev_b32 v121, 6, v0")
e("v_lshl_add_u32 v120, v121, 10, v120")
e("v_bfe_u32 v121, v0, 5, 1")
e("v_lshl_add_u32 v120, v121, 4, v120")
e("s_lshl_b32 s14, s15, 12")
for c in range(4):
    e(f"v_permlane32_swap_b32 v{104+c}, v{108+c}")
e("s_nop 1")
for c in range(4):
    e(f"v_add_f32 v{104+c}, v{104+c}, v{108+c}")
e("buffer_store_dwordx4 v[104:107], v120, s[32:35], s14 offen")
lab("L_main_done")
e("s_endpgm")

L.append(".globl glu_red_kernel\n.p2align 8\n.type glu_red_kernel,@function")
lab("glu_red_kernel")
e("s_cmp_ge_u32 s2, 64")
e("s_cbranch_scc1 L_red_done")
e("s_load_dwordx2 s[4:5], s[0:1], 32")
e("s_load_dwordx2 s[6:7], s[0:1], 48")
e("v_lshrrev_b32 v1, 2, v0")
e("v_lshlrev_b32 v1, 12, v1")
e("v_and_b32 v2, 3, v0")
e("v_lshl_add_u32 v1, v2, 4, v1")
e("s_lshl_b32 s20, s2, 6")
for i in range(1, 4):
    e(f"s_add_u32 s{20+i}, s20, {i*64*4096}")
e("s_waitcnt lgkmcnt(0)")
srd(8, 4, 2048)
srd(12, 6, 224*4096)
for i in range(4):
    e(f"buffer_load_dwordx4 v[{4+4*i}:{7+4*i}], v1, s[12:15], s{20+i} offen")
e("s_waitcnt vmcnt(0)")
for c in range(4):
    e(f"v_add_f32 v{4+c}, v{4+c}, v{8+c}")
    e(f"v_add_f32 v{12+c}, v{12+c}, v{16+c}")
for c in range(4):
    e(f"v_add_f32 v{4+c}, v{4+c}, v{12+c}")
e("s_nop 1")
for sh in (4, 8):
    for c in range(4):
        e(f"v_add_f32_dpp v{4+c}, v{4+c}, v{4+c} row_shr:{sh} row_mask:0xf bank_mask:0xf bound_ctrl:0")
    e("s_nop 1")
e("v_and_b32 v8, 12, v0")
e("v_lshrrev_b32 v9, 4, v0")
e("v_lshlrev_b32 v9, 6, v9")
e("v_lshl_add_u32 v9, v2, 4, v9")
e("v_cmp_eq_u32 vcc, 12, v8")
e("s_and_saveexec_b64 s[16:17], vcc")
e("ds_write_b128 v9, v[4:7]")
e("s_mov_b64 exec, s[16:17]")
e("s_waitcnt lgkmcnt(0)")
e("s_barrier")
e("v_cmp_gt_u32 vcc, 16, v0")
e("s_and_saveexec_b64 s[16:17], vcc")
e("s_cbranch_execz L_red_done")
e("v_lshlrev_b32 v9, 2, v0")
for i in range(16):
    e(f"ds_read_b32 v{16+i}, v9 offset:{i*64}")
e("s_waitcnt lgkmcnt(0)")
n = 16
while n > 1:
    for i in range(n//2):
        e(f"v_add_f32 v{16+i}, v{16+i}, v{16+i+n//2}")
    n //= 2
e("v_cvt_pk_bf16_f32 v16, v16, v16")
e("v_lshlrev_b32 v9, 1, v0")
e("s_lshl_b32 s20, s2, 5")
e("buffer_store_short v16, v9, s[8:11], s20 offen")
lab("L_red_done")
e("s_endpgm")

L.append('.section .rodata,"a"')
for name, nv in (("glu_main_kernel", 124), ("glu_red_kernel", 32)):
    L.append(f""".p2align 6
.amdhsa_kernel {name}
  .amdhsa_next_free_vgpr {nv}
  .amdhsa_next_free_sgpr 64
  .amdhsa_accum_offset {nv}
  .amdhsa_group_segment_fixed_size 0
  .amdhsa_kernarg_size 56
  .amdhsa_user_sgpr_count 2
  .amdhsa_user_sgpr_kernarg_segment_ptr 1
  .amdhsa_system_sgpr_workgroup_id_x 1
  .amdhsa_float_denorm_mode_32 3
.end_amdhsa_kernel""")
s = "\n".join(L) + "\n"
s = s.replace("s_movk_i32 s14, 7168*8", "s_mov_b32 s14, 57344")
open(sys.argv[1], "w").write(s)
```
